```python
import torch

def _softmax(x, axis=-1):
    return torch.softmax(x, dim=axis)
def _gelu(x):
    return torch.nn.functional.gelu(x, approximate="tanh")
def _silu(x):
    return torch.nn.functional.silu(x)
def _sigmoid(x):
    return torch.sigmoid(x)
def _layernorm(x, axis=-1, eps=1e-5):
    m = x.mean(dim=axis, keepdim=True)
    v = x.var(dim=axis, keepdim=True, unbiased=False)
    return (x - m) / torch.sqrt(v + eps)
def _scatter_add(tgt, idx, src, axis=0):
    return tgt.clone().index_add_(axis, idx, src)
def _segment_sum(src, seg, n):
    out = torch.zeros((n,) + src.shape[1:], dtype=src.dtype)
    return out.index_add_(0, seg, src)
def _pad(x, pw):
    flat = tuple(v for pair in reversed(pw) for v in pair)
    return torch.nn.functional.pad(x, flat)

kernel_name = 'gated_mix__sliding_local_dilated__spectral_fnet__prompt'

def setup_inputs():

    _w = (lambda a: (lambda t: t.to(torch.bfloat16) if t.is_floating_point() else t)(torch.as_tensor(a)))
    def _A_setup():
        B, S, D = 1, 2048, 1024
        return {
            "x": _w((lambda *s: torch.randn(*s, dtype=torch.bfloat16) * 0.05)(B, S, D)),
            "wqkv": _w((lambda *s: torch.randn(*s, dtype=torch.bfloat16) * 1.6)(D, 3 * D)),
            "wo": _w((lambda *s: torch.randn(*s, dtype=torch.bfloat16) * 0.2)(D, D)),
        }
    _A_in = _A_setup()

    def _B_setup():
        B, S, D = 1, 2048, 1024
        ns = torch.arange(S)[:, None] * torch.arange(S)[None, :]
        nd = torch.arange(D)[:, None] * torch.arange(D)[None, :]
        Ws_re = torch.cos(-2.0 * torch.pi * ns / S).to(float)
        Ws_im = torch.sin(-2.0 * torch.pi * ns / S).to(float)
        Wd_re = torch.cos(-2.0 * torch.pi * nd / D).to(float)
        Wd_im = torch.sin(-2.0 * torch.pi * nd / D).to(float)
        return {
            "x": _w((lambda *s: torch.randn(*s, dtype=torch.bfloat16) * 0.05)(B, S, D)),
            "dft_seq_re": _w(Ws_re),
            "dft_seq_im": _w(Ws_im),
            "dft_hid_re": _w(Wd_re),
            "dft_hid_im": _w(Wd_im),
        }
    _B_in = _B_setup()

    return {
        "A_x": _A_in["x"],
        "A_wqkv": _A_in["wqkv"],
        "A_wo": _A_in["wo"],
        "B_x": _B_in["x"],
        "B_dft_seq_re": _B_in["dft_seq_re"],
        "B_dft_seq_im": _B_in["dft_seq_im"],
        "B_dft_hid_re": _B_in["dft_hid_re"],
        "B_dft_hid_im": _B_in["dft_hid_im"],
        "gate_w": _w((lambda *s: torch.randn(*s, dtype=torch.bfloat16) * 0.05)(1024) * 16.0),
    }

def reference(A_x, A_wqkv, A_wo, B_x, B_dft_seq_re, B_dft_seq_im, B_dft_hid_re, B_dft_hid_im, gate_w):
    def _A_ref(x, wqkv, wo):
        B, S, D = x.shape
        H = 32; Dh = D // H
        W, dil = 8, 2
        qkv = (lambda x, *d: x.permute(*d))((x @ wqkv).reshape(B, S, 3, H, Dh), 2, 0, 3, 1, 4)
        q, k, v = qkv[0], qkv[1], qkv[2]
        scale = Dh ** -0.5
        pos = torch.arange(S)
        off = torch.arange(W) * dil
        idx = pos[:, None] - off[None, :]
        mask = idx >= 0
        idx_c = torch.where(mask, idx, 0).reshape(-1)
        kg = k[:, :, idx_c, :].reshape(B, H, S, W, Dh)
        vg = v[:, :, idx_c, :].reshape(B, H, S, W, Dh)
        logits = torch.einsum("bhsd,bhswd->bhsw", q, kg) * scale
        logits = torch.where(mask[None, None, :, :], logits, -1e9)
        attn = _softmax(logits, axis=-1)
        o = torch.einsum("bhsw,bhswd->bhsd", attn, vg)
        return (lambda x, *d: x.permute(*d))(o, 0, 2, 1, 3).reshape(B, S, D) @ wo

    def _B_ref(x, dft_seq_re, dft_seq_im, dft_hid_re, dft_hid_im):
        a = torch.einsum("bsd,ed->bse", x, dft_hid_re)
        b = torch.einsum("bsd,ed->bse", x, dft_hid_im)
        y = torch.einsum("ts,bse->bte", dft_seq_re, a) - torch.einsum("ts,bse->bte", dft_seq_im, b)
        return y

    x = A_x
    g = _sigmoid((x * gate_w).sum(-1, keepdims=True))
    a = _A_ref(x, A_wqkv, A_wo)
    b = _B_ref(x, B_dft_seq_re, B_dft_seq_im, B_dft_hid_re, B_dft_hid_im)
    return g * a + (1 - g) * b
```

```python
import re

TRANS = ("v_exp_f32", "v_log_f32", "v_rcp_f32", "v_rsq_f32", "v_sqrt_f32", "v_sin_f32", "v_cos_f32", "v_rcp_iflag_f32")

def v(i, n=1):
    return f"v{i}" if n == 1 else f"v[{i}:{i+n-1}]"
def a(i, n=1):
    return f"a{i}" if n == 1 else f"a[{i}:{i+n-1}]"
def s(i, n=1):
    return f"s{i}" if n == 1 else f"s[{i}:{i+n-1}]"

_reg = re.compile(r"^(-|abs\(|-abs\()?([vas])(\d+|\[(\d+):(\d+)\])\)?$")
def regs_of(tok):
    tok = tok.strip()
    if tok in ("vcc",): return {("s", 106), ("s", 107)}
    if tok == "exec": return {("s", 126), ("s", 127)}
    if tok == "m0": return {("s", 124)}
    m = _reg.match(tok)
    if not m: return set()
    k = m.group(2)
    if m.group(4) is not None:
        return {(k, i) for i in range(int(m.group(4)), int(m.group(5)) + 1)}
    return {(k, int(m.group(3)))}

class I:
    __slots__ = ("text", "op", "dst", "src", "kind", "label", "target", "passes", "srcC", "srcAB", "dpp", "ws", "widestore", "storedata", "uncond")
    def __init__(self, text):
        self.text = text; self.label = None; self.target = None; self.passes = 0
        self.srcC = set(); self.srcAB = set(); self.dpp = False; self.ws = 1; self.widestore = False; self.storedata = set()
        self.dst = set(); self.src = set(); self.uncond = False
        t = text.split(";")[0].strip()
        if t.endswith(":"):
            self.label = t[:-1]; self.op = "label"; self.kind = "label"; self.ws = 0; return
        if t.startswith("."):
            self.op = t; self.kind = "dir"; self.ws = 0; return
        parts = t.split(None, 1)
        op = parts[0]; self.op = op
        rest = parts[1] if len(parts) > 1 else ""
        ops = [o.strip() for o in rest.split(",")] if rest else []
        mods = []
        if ops:
            last = ops[-1].split()
            if last:
                ops[-1] = last[0]; mods = last[1:]
        R = [regs_of(o) for o in ops]
        allr = set().union(*R) if R else set()
        if op == "s_nop":
            self.kind = "salu"; self.ws = int(ops[0], 0) + 1; return
        if op.startswith("s_cbranch") or op == "s_branch":
            self.kind = "branch"; self.target = ops[0]; self.uncond = (op == "s_branch"); return
        if op == "s_endpgm":
            self.kind = "end"; return
        if op.startswith("s_"):
            self.kind = "salu"
            if op.startswith(("s_cmp", "s_waitcnt", "s_barrier", "s_setprio", "s_sleep")):
                self.src = allr
            elif op.startswith("s_load") or op.startswith("s_memtime") or op.startswith("s_memrealtime"):
                self.kind = "smem"; self.dst = R[0]; self.src = set().union(*R[1:]) if len(R) > 1 else set()
            else:
                self.dst = R[0] if R else set(); self.src = set().union(*R[1:]) if len(R) > 1 else set()
                if "saveexec" in op: self.dst = self.dst | regs_of("exec")
            return
        if op.startswith("v_mfma"):
            self.kind = "mfma"; self.dst = R[0]; self.srcAB = R[1] | R[2]; self.srcC = R[3]; self.src = self.srcAB | self.srcC
            self.passes = 8 if "32x32x16" in op else 4 if "16x16x32" in op else None
            assert self.passes, op
            return
        if op.startswith("v_"):
            self.kind = "valu"
            self.dpp = any(m.startswith(("row_", "quad_perm", "wave_")) for m in mods) or op.endswith("_dpp")
            if op.startswith("v_cmp"):
                self.dst = R[0]; self.src = set().union(*R[1:])
                if op.startswith("v_cmpx"): self.dst = self.dst | regs_of("exec")
            elif op.startswith("v_permlane") and "swap" in op:
                self.dst = R[0] | R[1]; self.src = R[0] | R[1]
            elif "_co_" in op:
                self.dst = R[0] | R[1]; self.src = set().union(*R[2:])
            else:
                self.dst = R[0]; self.src = set().union(*R[1:]) if len(R) > 1 else set()
                if op.startswith(("v_fmac", "v_dot2c", "v_pk_fmac")) or self.dpp: self.src = self.src | R[0]
            return
        if op.startswith("ds_"):
            self.kind = "ds"
            if op.startswith(("ds_read", "ds_bpermute", "ds_permute", "ds_swizzle")):
                self.dst = R[0]; self.src = set().union(*R[1:])
            else:
                self.src = allr
            return
        if op.startswith(("buffer_", "global_")):
            self.kind = "vmem"
            if "lds" in mods or "_lds_" in op:
                self.src = allr | regs_of("m0"); self.kind = "vmem"; self.op = op + "+lds"
            elif "_load" in op:
                self.dst = R[0]; self.src = set().union(*R[1:])
            else:
                self.src = allr
                data = R[0] if op.startswith("buffer_") else R[1]
                if op.endswith(("x3", "x4")):
                    self.widestore = True; self.storedata = data
            return
        raise ValueError("unknown instr: " + text)

def need(p, c):
    n = 0
    vec = lambda S: {r for r in S if r[0] in "va"}
    sg = lambda S: {r for r in S if r[0] == "s"}
    if p.kind == "valu":
        pv = vec(p.dst); ps = sg(p.dst)
        if c.kind == "mfma" and pv & c.src: n = max(n, 3 if p.op.startswith("v_dot") else 2)
        if c.kind == "mfma" and ps & regs_of("exec"): n = max(n, 4)
        if c.kind == "valu":
            if c.dpp and pv & c.src: n = max(n, 2)
            if c.dpp and ps & regs_of("exec"): n = max(n, 5)
            if c.op.startswith("v_permlane") and pv & c.src: n = max(n, 2)
            if c.op.startswith("v_permlane") and ps & regs_of("exec"): n = max(n, 4)
            if c.op.startswith(("v_readlane", "v_readfirstlane")) and pv & c.src: n = max(n, 1)
            if c.op.startswith(("v_readlane", "v_readfirstlane", "v_writelane")) and ps & regs_of("exec"): n = max(n, 4)
            if c.op.startswith(("v_readlane", "v_writelane")) and ps & c.src: n = max(n, 4)
            if ps & c.src: n = max(n, 2)
            if p.op.startswith(TRANS) and not c.op.startswith(TRANS) and pv & (c.src | c.dst): n = max(n, 1)
            if p.op.startswith("v_dot") and pv & (c.src | c.dst):
                if c.op != p.op: n = max(n, 3)
                else:
                    toks = c.text.split(";")[0].split(None, 1)[1].split(",")
                    ab = regs_of(toks[1]) | regs_of(toks[2].split()[0])
                    if pv & ab: n = max(n, 3)
        if c.kind in ("vmem", "ds") and p.op.startswith("v_dot") and pv & c.src: n = max(n, 3)
        if c.kind in ("vmem", "ds") and p.op.startswith(TRANS) and pv & c.src: n = max(n, 1)
        if c.kind == "vmem" and ps & c.src: n = max(n, 5)
        if c.kind in ("salu", "branch") and ps & c.src: n = max(n, 1)
    if p.kind == "salu":
        if regs_of("m0") & p.dst and c.kind == "vmem" and c.op.endswith("+lds"): n = max(n, 1)
    if p.kind == "vmem" and p.widestore:
        if p.storedata & c.dst: n = max(n, 2 if c.kind in ("valu", "mfma") else 1)
    if p.kind == "mfma":
        P = p.passes
        raw = {4: 8, 8: 12}[P]; ovl = {4: 6, 8: 10}[P]; war = {4: 3, 8: 7}[P]
        if c.kind == "mfma":
            if p.dst & c.srcAB: n = max(n, raw)
            if p.dst & c.srcC:
                if not (c.srcC == p.dst and c.passes == P): n = max(n, ovl)
            elif p.dst & c.dst: n = max(n, ovl)
        elif c.kind in ("valu", "vmem", "ds"):
            if p.dst & (c.src | c.dst): n = max(n, raw)
            if c.kind == "valu" and p.srcC & c.dst: n = max(n, war)
            if c.kind in ("vmem", "ds") and p.srcC & c.dst: n = max(n, war)
    return n

class Asm:
    def __init__(self):
        self.ins = []
        self.vmq = []
        self.lgq = []
    def __call__(self, text, vm=None, lg=None):
        for line in text.strip("\n").split("\n"):
            if not line.strip() or line.strip().startswith(";"): continue
            i = I(line.strip()); self.ins.append(i)
            if i.kind == "vmem": self.vmq.append(vm)
            if i.kind == "ds": self.lgq.append(lg)
    def label(self, name): self(f"{name}:")
    def reset_q(self): self.vmq = []; self.lgq = []
    def vm_n(self, tag):
        idx = max(i for i, t in enumerate(self.vmq) if t == tag)
        return len(self.vmq) - 1 - idx
    def wait_vm(self, tag, extra=""):
        n = self.vm_n(tag)
        assert n <= 63, n
        self(f"s_waitcnt vmcnt({n}){extra}")
    def wait_lg(self, tag):
        idx = max(i for i, t in enumerate(self.lgq) if t == tag)
        n = min(len(self.lgq) - 1 - idx, 15)
        self(f"s_waitcnt lgkmcnt({n})")
    def finalize(self):
        ins = self.ins
        out = []
        labels = {}
        i = 0
        work = list(ins)
        inserted = 0
        while i < len(work):
            c = work[i]
            if c.kind in ("label", "dir", "end"):
                i += 1; continue
            lab = {x.label: k for k, x in enumerate(work) if x.label} if (i == 0 or self._dirty) else lab
            br = {} if False else None
            self._dirty = False
            if i == 0 or not hasattr(self, "_br") or self._brlen != len(work):
                self._br = {}
                for k, x in enumerate(work):
                    if x.kind == "branch": self._br.setdefault(x.target, []).append(k)
                self._brlen = len(work)
            MAXD = 20
            worst = 0
            stack = [(i - 1, 0)]
            seen = {}
            while stack:
                k, d = stack.pop()
                while k >= 0 and d < MAXD:
                    if seen.get(k, 99) <= d: break
                    seen[k] = d
                    p = work[k]
                    if p.kind == "label":
                        for b in self._br.get(p.label, []):
                            stack.append((b, d))
                        k -= 1
                        if k >= 0 and (work[k].kind == "end" or (work[k].kind == "branch" and work[k].uncond)): break
                        continue
                    if p.kind in ("dir",):
                        k -= 1; continue
                    n = need(p, c)
                    if n > d: worst = max(worst, n - d)
                    d += p.ws
                    k -= 1
                    if k >= 0 and (work[k].kind == "end" or (work[k].kind == "branch" and work[k].uncond)): break
            if worst > 0:
                w = worst
                nops = []
                while w > 0:
                    t = min(w, 16); nops.append(I(f"s_nop {t-1}")); w -= t
                work[i:i] = nops
                i += len(nops); inserted += worst
                self._dirty = True
            i += 1
        self.inserted = inserted
        return "\n".join(("" if x.kind == "label" else "    ") + x.text for x in work) + "\n"
    _dirty = True
```

```python
import sys, struct
from asmgen import Asm, v, a, s
from hdr import wrap

def f2u(x): return struct.unpack("<I", struct.pack("<f", x))[0]
def lit(x): return "0x%08x" % f2u(x)

WS_O = 0
WS_Z = 4 << 20
WS_G = 12 << 20
WS_BYTES = WS_G + 8192
SLOT = 43008
XB = 18432
VBUF = 3 * SLOT
VSTR = 2064
DUMMY = VBUF + 16 * VSTR
GSCR = DUMMY + 1024
K1_LDS = 163840
assert GSCR + 128 <= K1_LDS

def srd(A, d, base, nbytes):
    A(f"s_mov_b32 s{d}, s{base}")
    A(f"s_and_b32 s{d+1}, s{base+1}, 0xffff")
    A(f"s_mov_b32 s{d+2}, 0x{nbytes:x}")
    A(f"s_mov_b32 s{d+3}, 0x00020000")

def interleave(A, mf, fill, per_gap=1, start=0):
    fi = 0
    for k, m in enumerate(mf):
        A(m)
        if k >= start:
            for _ in range(per_gap):
                if fi < len(fill):
                    f = fill[fi]; fi += 1
                    if f is not None: A(f)
    while fi < len(fill):
        if fill[fi] is not None: A(fill[fi])
        fi += 1

def gen_k1(opts):
    A = Asm()
    SX, SW, SWS, SGW = 12, 16, 20, 24
    sW, sRT, sHP, sU, sQ = 28, 29, 30, 31, 32
    A("s_cmp_ge_u32 s2, 256")
    A("s_cbranch_scc1 K1_END")
    A("s_load_dwordx4 s[4:7], s[0:1], 0")
    A("s_load_dwordx2 s[8:9], s[0:1], 64")
    A("s_load_dwordx2 s[10:11], s[0:1], 88")
    A("v_lshrrev_b32 v1, 6, v0")
    A("v_and_b32 v0, 63, v0")
    A(f"v_readfirstlane_b32 s{sW}, v1")
    A("s_and_b32 s33, s2, 7")
    A("s_lshr_b32 s34, s2, 3")
    A("s_and_b32 s35, s33, 1")
    A("s_lshl_b32 s35, s35, 3")
    A("s_and_b32 s36, s34, 7")
    A(f"s_add_u32 s{sRT}, s35, s36")
    A("s_lshr_b32 s35, s33, 1")
    A("s_lshl_b32 s35, s35, 2")
    A("s_lshr_b32 s36, s34, 3")
    A(f"s_add_u32 s{sHP}, s35, s36")
    A("s_lshl_b32 s35, s33, 3")
    A("s_lshr_b32 s36, s34, 2")
    A(f"s_add_u32 s{sU}, s35, s36")
    A(f"s_and_b32 s{sQ}, s34, 3")
    A("s_waitcnt lgkmcnt(0)")
    srd(A, SX, 4, 4 << 20)
    srd(A, SW, 6, 6 << 20)
    srd(A, SWS, 10, WS_BYTES)
    srd(A, SGW, 8, 2048)
    A(f"s_cmp_ge_u32 s{sW}, 4")
    A("s_cbranch_scc1 K1_AUX")

    vXa = [2, 6]; vXh = [3, 7]; vWa = [[4, 5], [8, 9]]
    FX = lambda st, b: 16 + st * 20 + b * 4
    FW = lambda st, sub, blk: 56 + st * 24 + (sub * 2 + blk) * 4
    accQ = lambda b, blk: 104 + ((b - 1) * 2 + blk) * 4
    accK = lambda b, blk: 136 + (b * 2 + blk) * 4
    accV = lambda b, blk: 176 + (b * 2 + blk) * 4
    sP, sHH = 33, 34
    A(f"s_and_b32 s{sP}, s{sW}, 1")
    A(f"s_lshr_b32 s{sHH}, s{sW}, 1")
    A("v_and_b32 v10, 15, v0")
    A("v_lshrrev_b32 v11, 4, v0")
    A(f"s_mul_i32 s35, s{sP}, 72")
    A("v_add_u32 v12, s35, v10")
    A("v_add_u32 v13, 8, v12")
    A("v_lshrrev_b32 v14, 1, v13")
    A("v_and_b32 v14, 7, v14")
    A("v_xor_b32 v14, v14, v11")
    A("v_lshlrev_b32 v14, 4, v14")
    A(f"v_lshl_add_u32 v{vXa[0]}, v13, 7, v14")
    A(f"v_xor_b32 v{vXa[1]}, 64, v{vXa[0]}")
    A("v_xor_b32 v13, 8, v10")
    A("v_add_u32 v13, s35, v13")
    A("v_lshrrev_b32 v14, 1, v13")
    A("v_and_b32 v14, 7, v14")
    A("v_xor_b32 v14, v14, v11")
    A("v_lshlrev_b32 v14, 4, v14")
    A(f"v_lshl_add_u32 v{vXh[0]}, v13, 7, v14")
    A(f"v_xor_b32 v{vXh[1]}, 64, v{vXh[0]}")
    A("v_bfe_u32 v12, v0, 2, 2")
    A("v_lshl_add_u32 v13, v11, 3, v12")
    A("v_lshrrev_b32 v14, 1, v12")
    A("v_and_b32 v15, 1, v11")
    A("v_lshl_or_b32 v14, v15, 1, v14")
    A(f"s_lshl_b32 s35, s{sHH}, 1")
    A("v_xor_b32 v14, s35, v14")
    A("v_lshlrev_b32 v14, 5, v14")
    A("v_lshl_add_u32 v14, v13, 7, v14")
    A("v_and_b32 v15, 3, v0")
    A("v_lshl_add_u32 v14, v15, 3, v14")
    A(f"v_add_u32 v{vWa[0][0]}, {XB}, v14")
    A(f"v_xor_b32 v{vWa[0][1]}, 32, v{vWa[0][0]}")
    A(f"v_mov_b32 v{vWa[1][0]}, v{vWa[0][0]}")
    A(f"v_mov_b32 v{vWa[1][1]}, v{vWa[0][1]}")
    for r in range(104, 216): A(f"v_mov_b32 v{r}, 0")

    def reads(st):
        L = []
        def wrd(sub, blk):
            for sec in range(2):
                L.append(f"ds_read_b64_tr_b16 {v(FW(st, sub, blk) + 2*sec, 2)}, v{vWa[st][blk]} offset:{sub*8192 + st*4096 + sec*512}")
        def xrd(b):
            if b == 0: L.append(f"ds_read_b128 {v(FX(st, 0), 4)}, v{vXh[st]}")
            else: L.append(f"ds_read_b128 {v(FX(st, b), 4)}, v{vXa[st]} offset:{(b-1)*2048}")
        wrd(1, 0); xrd(0); xrd(1); xrd(2); xrd(3); xrd(4); wrd(1, 1); wrd(2, 0); wrd(2, 1); wrd(0, 0); wrd(0, 1)
        return L
    def mfmas(st):
        L = []
        for blk in range(2):
            for b in range(5):
                L.append(f"v_mfma_f32_16x16x32_bf16 {v(accK(b,blk),4)}, {v(FW(st,1,blk),4)}, {v(FX(st,b),4)}, {v(accK(b,blk),4)}")
        for blk in range(2):
            for b in range(5):
                L.append(f"v_mfma_f32_16x16x32_bf16 {v(accV(b,blk),4)}, {v(FX(st,b),4)}, {v(FW(st,2,blk),4)}, {v(accV(b,blk),4)}")
        for blk in range(2):
            for b in range(1, 5):
                L.append(f"v_mfma_f32_16x16x32_bf16 {v(accQ(b,blk),4)}, {v(FW(st,0,blk),4)}, {v(FX(st,b),4)}, {v(accQ(b,blk),4)}")
        return L
    sCNT, sSL, sDL = 36, 37, 38
    A(f"s_mov_b32 s{sCNT}, 0")
    A(f"s_mov_b32 s{sSL}, 0")
    A(f"s_mov_b32 s39, {SLOT}")
    A(f"s_mov_b32 s40, {(-2*SLOT) & 0xffffffff}")
    if opts.get("prio"): A("s_setprio 1")
    A("s_barrier")
    for r in reads(0): A(r)
    A.label("K1_LOOP")
    A("s_waitcnt lgkmcnt(0)")
    adv = lambda st: [f"v_add_u32 v{r}, s{sDL}, v{r}" for r in (vXa[st], vXh[st], vWa[st][0], vWa[st][1])]
    dl = [f"s_add_u32 s{sSL}, s{sSL}, 1\ns_cmp_eq_u32 s{sSL}, 3\ns_cselect_b32 s{sDL}, s40, s39\ns_cselect_b32 s{sSL}, 0, s{sSL}"]
    fill = reads(1) + dl + adv(0) + [None, "s_waitcnt lgkmcnt(0)\ns_barrier"]
    interleave(A, mfmas(0), fill)
    fill = reads(0) + adv(1) + [f"s_add_u32 s{sCNT}, s{sCNT}, 1\ns_cmp_lt_u32 s{sCNT}, 16"]
    interleave(A, mfmas(1), fill)
    A("s_cbranch_scc1 K1_LOOP")

    Qf = lambda b: 16 + (b - 1) * 4
    Kf = lambda b: 32 + b * 4
    Vp = lambda blk, b: 52 + blk * 10 + b * 2
    mC, mP, mP1 = 72, 76, 80
    selP = 84
    Sc = lambda b: 216 + (b - 1) * 8
    Sp = lambda b: 220 + (b - 1) * 8
    vO = 86
    A("s_waitcnt lgkmcnt(0)")
    BIG = lit(-1e30)
    A(f"s_mov_b32 s41, {BIG}")
    A("v_lshlrev_b32 v12, 2, v11")
    A("v_sub_u32 v12, v10, v12")
    A(f"v_mov_b32 v15, s41")
    A(f"s_cmp_eq_u32 s{sRT}, 0")
    A("s_cselect_b32 s42, s41, 0")
    for r in range(4):
        A(f"v_subrev_u32 v13, {r}, v12")
        A(f"v_cmp_gt_u32 vcc, 8, v13")
        A(f"v_cndmask_b32 v{mC+r}, v15, 0, vcc") if False else None
        A(f"v_cndmask_b32_e64 v{mC+r}, v15, 0, vcc")
        A(f"v_cmp_gt_i32 vcc, -8, v13")
        A(f"v_cndmask_b32_e64 v{mP+r}, v15, 0, vcc")
        A(f"v_min_f32 v{mP1+r}, s42, v{mP+r}")
    for pr in range(2):
        A(f"v_subrev_u32 v13, {2*pr}, v12")
        A(f"v_ashrrev_i32 v14, 31, v13")
        A(f"v_subrev_u32 v13, {2*pr+1}, v12")
        A(f"v_ashrrev_i32 v13, 31, v13")
        A(f"v_and_b32 v14, 0xffff, v14")
        A(f"v_and_b32 v13, 0xffff0000, v13")
        A(f"v_or_b32 v{selP+pr}, v13, v14")
    A(f"s_lshl_b32 s43, s{sRT}, 7")
    A(f"s_add_u32 s43, s43, s{sP}")
    A(f"s_lshl_b32 s43, s43, 11")
    A(f"s_lshl_b32 s44, s{sHP}, 7")
    A(f"s_add_u32 s43, s43, s44")
    A(f"s_lshl_b32 s44, s{sHH}, 6")
    A(f"s_add_u32 s43, s43, s44")
    A(f"v_lshlrev_b32 v13, 12, v10")
    A(f"v_lshl_add_u32 v13, v11, 4, v13")
    A(f"v_add_u32 v{vO}, s43, v13")
    def pack4(dst, a0, a1):
        A(f"v_cvt_pk_bf16_f32 v{dst}, v{a0}, v{a0+1}")
        A(f"v_cvt_pk_bf16_f32 v{dst+1}, v{a0+2}, v{a0+3}")
        A(f"v_cvt_pk_bf16_f32 v{dst+2}, v{a1}, v{a1+1}")
        A(f"v_cvt_pk_bf16_f32 v{dst+3}, v{a1+2}, v{a1+3}")
    for b in range(5): pack4(Kf(b), accK(b, 0), accK(b, 1))
    for b in range(1, 5):
        pack4(Qf(b), accQ(b, 0), accQ(b, 1))
    for b in range(1, 5):
        A(f"v_mfma_f32_16x16x32_bf16 {v(Sc(b),4)}, {v(Kf(b),4)}, {v(Qf(b),4)}, {v(mC,4)}")
        A(f"v_mfma_f32_16x16x32_bf16 {v(Sp(b),4)}, {v(Kf(b-1),4)}, {v(Qf(b),4)}, {v(mP1 if b == 1 else mP,4)}")
    for blk in range(2):
        for b in range(5):
            A(f"v_cvt_pk_bf16_f32 v{Vp(blk,b)}, v{accV(b,blk)}, v{accV(b,blk)+1}")
            A(f"v_cvt_pk_bf16_f32 v{Vp(blk,b)+1}, v{accV(b,blk)+2}, v{accV(b,blk)+3}")
    mx = [88, 89, 90, 91]
    for b in range(1, 5):
        for r in range(4): A(f"v_max_f32 v{Sc(b)+r}, v{Sc(b)+r}, v{Sp(b)+r}")
        A(f"v_max3_f32 v{mx[b-1]}, v{Sc(b)}, v{Sc(b)+1}, v{Sc(b)+2}")
        A(f"v_max_f32 v{mx[b-1]}, v{mx[b-1]}, v{Sc(b)+3}")
    def reduce4(op, mid):
        x0, x1, x2, x3 = mx
        A(f"v_permlane16_swap_b32 v{x0}, v{x1}")
        A(f"v_permlane16_swap_b32 v{x2}, v{x3}")
        A(f"{op} v{x0}, v{x0}, v{x1}")
        A(f"{op} v{x2}, v{x2}, v{x3}")
        A(f"v_permlane32_swap_b32 v{x0}, v{x2}")
        A(f"{op} v{x0}, v{x0}, v{x2}")
        mid(x0)
        A(f"v_mov_b32 v{x2}, v{x0}")
        A(f"v_permlane32_swap_b32 v{x0}, v{x2}")
        A(f"v_mov_b32 v{x1}, v{x0}")
        A(f"v_mov_b32 v{x3}, v{x2}")
        A(f"v_permlane16_swap_b32 v{x0}, v{x1}")
        A(f"v_permlane16_swap_b32 v{x2}, v{x3}")
    import math
    CS = 32 ** -0.5 * math.log2(math.e)
    A(f"s_mov_b32 s45, {lit(CS)}")
    reduce4("v_max_f32", lambda x: A(f"v_mul_f32 v{x}, {lit(-CS)}, v{x}"))
    for b in range(1, 5):
        for r in range(4): A(f"v_fma_f32 v{Sc(b)+r}, v{Sc(b)+r}, s45, v{mx[b-1]}")
        for r in range(4): A(f"v_exp_f32 v{Sc(b)+r}, v{Sc(b)+r}")
    for b in range(1, 5):
        A(f"v_add_f32 v{mx[b-1]}, v{Sc(b)}, v{Sc(b)+1}")
        A(f"v_add_f32 v{Sp(b)}, v{Sc(b)+2}, v{Sc(b)+3}")
        A(f"v_add_f32 v{mx[b-1]}, v{mx[b-1]}, v{Sp(b)}")
    reduce4("v_add_f32", lambda x: A(f"v_rcp_f32 v{x}, v{x}"))
    Oacc = lambda b, blk: 104 + ((b - 1) * 2 + blk) * 4
    for b in range(1, 5):
        for r in range(4): A(f"v_mul_f32 v{Sc(b)+r}, v{Sc(b)+r}, v{mx[b-1]}")
        A(f"v_cvt_pk_bf16_f32 v{Sc(b)}, v{Sc(b)}, v{Sc(b)+1}")
        A(f"v_cvt_pk_bf16_f32 v{Sc(b)+1}, v{Sc(b)+2}, v{Sc(b)+3}")
        A(f"v_and_b32 v{Sp(b)}, v{selP}, v{Sc(b)}")
        A(f"v_and_b32 v{Sp(b)+1}, v{selP+1}, v{Sc(b)+1}")
        A(f"v_bfi_b32 v{Sp(b)+2}, v{selP}, 0, v{Sc(b)}")
        A(f"v_bfi_b32 v{Sp(b)+3}, v{selP+1}, 0, v{Sc(b)+1}")
    for b in range(1, 5):
        for blk in range(2):
            A(f"v_mfma_f32_16x16x32_bf16 {v(Oacc(b,blk),4)}, {v(Vp(blk,b-1),4)}, {v(Sp(b),4)}, 0")
    for b in range(1, 5):
        pack4(Qf(b), Oacc(b, 0), Oacc(b, 1))
        A(f"s_mov_b32 s46, {(b-1)*65536 + WS_O}")
        A(f"buffer_store_dwordx4 {v(Qf(b),4)}, v{vO}, s[{SWS}:{SWS+3}], s46 offen")
    A("s_endpgm")

    A.label("K1_AUX")
    A.reset_q()
    sAW = 33
    vDX = [2, 3, 4, 5, 6]; vDW = 7; vFX = 8; vGW = 9; vVW = [10, 11]; vVR = [12, 13]; vZ = 14
    A(f"s_sub_u32 s{sAW}, s{sW}, 4")
    A("v_lshrrev_b32 v16, 3, v0")
    A("v_and_b32 v17, 7, v0")
    A(f"s_and_b32 s34, s{sAW}, 1")
    A("s_lshl_b32 s35, s34, 2")
    A("v_lshrrev_b32 v18, 1, v16")
    A("v_or_b32 v18, s35, v18")
    A("v_xor_b32 v18, v18, v17")
    A("v_lshlrev_b32 v18, 4, v18")
    A("v_lshl_add_u32 v18, v16, 12, v18")
    A(f"s_lshl_b32 s36, s{sRT}, 7")
    for j in range(5):
        A(f"s_add_u32 s37, s{sAW}, {4*j}")
        A("s_lshl_b32 s38, s37, 4")
        A("s_add_u32 s38, s38, s36")
        A("s_cmp_ge_u32 s37, 9")
        A("s_cselect_b32 s39, 159, 16")
        A("s_sub_u32 s38, s38, s39")
        A("s_lshl_b32 s38, s38, 11")
        if j == 4:
            A(f"s_cmp_ge_u32 s{sAW}, 2")
            A("s_cselect_b32 s38, 0x80000000, s38")
        A(f"v_add_u32 v{vDX[j]}, s38, v18")
    A("v_and_b32 v18, 2, v16")
    A("v_or_b32 v18, s35, v18")
    A("v_xor_b32 v18, v18, v17")
    A("v_lshlrev_b32 v18, 4, v18")
    A(f"s_lshl_b32 s37, s{sAW}, 3")
    A("v_add_u32 v19, s37, v16")
    A("v_mul_u32_u24 v19, 6144, v19")
    A(f"s_lshl_b32 s37, s{sHP}, 7")
    A(f"v_add3_u32 v{vDW}, v19, v18, s37")
    sAB = 40
    sD5 = [41, 42, 43]
    A(f"s_lshl_b32 s{sAB}, s{sAW}, 10")
    A(f"s_cmp_ge_u32 s{sAW}, 2")
    for k in range(3):
        A(f"s_add_u32 s37, s{sAB}, {k*SLOT + 16384}") if False else None
    for k in range(3):
        A(f"s_add_u32 s{sD5[k]}, s{sAB}, {k*SLOT + 16384}")
    A(f"s_cmp_ge_u32 s{sAW}, 2")
    for k in range(3):
        A(f"s_cselect_b32 s{sD5[k]}, {DUMMY}, s{sD5[k]}")

    def stage(st):
        sl = (st % 3) * SLOT
        tag = f"st{st}"
        A(f"s_mov_b32 s44, {st*128}")
        for j in range(5):
            if j < 4: A(f"s_add_u32 m0, s{sAB}, {sl + j*4096}")
            else: A(f"s_mov_b32 m0, s{sD5[st % 3]}")
            A(f"buffer_load_dwordx4 v{vDX[j]}, s[{SX}:{SX+3}], s44 offen lds", vm=tag)
        for hf in range(2):
            for sub in range(3):
                A(f"s_add_u32 m0, s{sAB}, {sl + XB + sub*8192 + hf*4096}")
                A(f"s_mov_b32 s45, {st*393216 + hf*196608 + sub*2048}")
                A(f"buffer_load_dwordx4 v{vDW}, s[{SW}:{SW+3}], s45 offen lds", vm=tag)
    stage(0); stage(1)
    FFT = opts.get("fft", True)
    X = lambda b, i: 32 + (b * 8 + i) * 4
    GW = lambda b: 96 + b * 4
    F32 = 104
    AF = lambda j: 108 + j * 4
    DA = lambda b, j: 140 + (b * 8 + j) * 4
    PW = lambda k: 204 + k * 4
    Fr = lambda sg: 212 + sg * 4
    Fi = lambda sg: 220 + sg * 4
    Fn = lambda sg: 228 + sg * 4
    if FFT:
        A("v_and_b32 v16, 15, v0")
        A("v_lshrrev_b32 v17, 4, v0")
        A("v_and_b32 v18, 3, v16")
        A("v_lshrrev_b32 v19, 2, v16")
        A("v_lshl_add_u32 v18, v18, 2, v19")
        A("v_lshlrev_b32 v18, 4, v18")
        A(f"s_lshr_b32 s35, s{sAW}, 1")
        A("s_lshl_b32 s36, s35, 2")
        A("s_add_u32 s36, s36, s34")
        A("s_lshl_b32 s36, s36, 8")
        A(f"v_add_u32 v{vGW}, s36, v18")
        A(f"s_lshl_b32 s37, s{sU}, 11")
        A("v_lshlrev_b32 v19, 18, v17")
        A(f"v_add3_u32 v{vFX}, v{vGW}, v19, s37")
        for ip in range(4):
            A(f"s_xor_b32 s46, s{sQ}, {ip}")
            A("s_lshl_b32 s46, s46, 20")
            A("s_add_u32 s47, s46, 131072")
            for b in range(2):
                A(f"buffer_load_dwordx4 {v(X(b,2*ip),4)}, v{vFX}, s[{SX}:{SX+3}], s46 offen offset:{b*512}", vm="fx")
                A(f"buffer_load_dwordx4 {v(X(b,2*ip+1),4)}, v{vFX}, s[{SX}:{SX+3}], s47 offen offset:{b*512}", vm="fx")
        for b in range(2):
            A(f"buffer_load_dwordx4 {v(GW(b),4)}, v{vGW}, s[{SGW}:{SGW+3}], 0 offen offset:{b*512}", vm="fx")
    stage(2)
    if FFT:
        A("v_lshrrev_b32 v18, 1, v16")
        A(f"s_lshl_b32 s46, s{sQ}, 3")
        A("v_add_u32 v18, s46, v18")
        A("v_cvt_f32_u32 v18, v18")
        A(f"v_mul_f32 v18, {lit(1/32)}, v18")
        A("v_and_b32 v19, 1, v16")
        A("v_cvt_f32_u32 v19, v19")
        A("v_mul_f32 v19, 0.25, v19") if False else A(f"v_mul_f32 v19, {lit(0.25)}, v19")
        A("v_lshlrev_b32 v20, 1, v17")
        for ip in range(4):
            A(f"s_xor_b32 s46, s{sQ}, {ip}")
            A("s_lshl_b32 s46, s46, 3")
            A("v_add_u32 v21, s46, v20")
            A("v_cvt_f32_u32 v21, v21")
            A("v_fma_f32 v22, v21, v18, v19")
            A("v_add_f32 v23, v22, v18")
            A("v_cos_f32 v22, v22")
            A("v_cos_f32 v23, v23")
            A(f"v_cvt_pk_bf16_f32 v{F32+ip}, v22, v23")
        A("v_bfe_u32 v18, v0, 2, 1")
        A("v_bfe_u32 v19, v0, 3, 2")
        A("v_and_b32 v20, 3, v0")
        A("v_lshl_add_u32 v20, v19, 2, v20")
        A("v_lshl_add_u32 v20, v18, 4, v20")
        A("v_lshrrev_b32 v21, 5, v0")
        A("v_lshlrev_b32 v22, 6, v20")
        A(f"v_lshl_add_u32 v{vZ}, v21, 5, v22")
        A("v_cvt_f32_u32 v24, v20")
        A("v_cvt_f32_u32 v25, v21")
        A("v_mul_f32 v25, v25, v24")
        A(f"v_mul_f32 v26, {lit(4/32)}, v25")
        for sg in range(2):
            for jp in range(4):
                for k in range(2):
                    jj = 2 * jp + k
                    kap = 16 * sg + 8 * (jj >> 2) + (jj & 3)
                    A(f"v_fmamk_f32 v{18+k}, v24, {lit(kap/32)}, v26")
                A("v_cos_f32 v20, v18")
                A("v_cos_f32 v21, v19")
                A("v_sin_f32 v22, v18")
                A("v_sin_f32 v23, v19")
                A(f"v_cvt_pk_bf16_f32 v{Fr(sg)+jp}, v20, v21")
                A(f"v_cvt_pk_bf16_f32 v{Fn(sg)+jp}, v22, v23")
                A(f"v_cvt_pk_bf16_f32 v{Fi(sg)+jp}, -v22, -v23")
        A(f"v_mul_u32_u24 v18, {VSTR}, v16")
        A("v_lshl_add_u32 v18, v17, 9, v18")
        A("v_lshlrev_b32 v19, 1, v17")
        A("v_and_b32 v19, 3, v19")
        A(f"v_xor_b32 v19, s{sAW}, v19")
        A("v_lshlrev_b32 v19, 4, v19")
        A("v_xor_b32 v20, 16, v19")
        A(f"v_add_u32 v18, {VBUF}, v18")
        A(f"v_add_u32 v{vVW[0]}, v18, v19")
        A(f"v_add_u32 v{vVW[1]}, v18, v20")
        A("v_and_b32 v18, 31, v0")
        A("v_bfe_u32 v19, v0, 2, 2")
        A("v_lshrrev_b32 v20, 5, v0")
        A("v_xor_b32 v19, v19, v20")
        A("v_lshlrev_b32 v19, 4, v19")
        A("v_xor_b32 v20, 32, v19")
        A(f"s_mul_i32 s46, s{sAW}, {4*VSTR}")
        A(f"s_add_u32 s46, s46, {VBUF}")
        A("v_lshlrev_b32 v18, 6, v18")
        A(f"v_add3_u32 v{vVR[0]}, v18, v19, s46")
        A(f"v_add3_u32 v{vVR[1]}, v18, v20, s46")
        A("s_mov_b32 s48, 0x05040100")
        A("s_mov_b32 s49, 0x07060302")

    def sl_gate_and_blk(b):
        if b == 0:
            A.wait_vm("fx")
            A("v_mov_b32 v18, 0")
            A("v_mov_b32 v19, 0")
            for bb in range(2):
                for dw in range(4):
                    A(f"v_dot2c_f32_bf16 v18, v{X(bb,0)+dw}, v{GW(bb)+dw}")
                    A(f"v_dot2c_f32_bf16 v19, v{X(bb,1)+dw}, v{GW(bb)+dw}")
            for sh in (8, 4, 2, 1):
                A(f"v_add_f32_dpp v18, v18, v18 row_ror:{sh} row_mask:0xf bank_mask:0xf")
                A(f"v_add_f32_dpp v19, v19, v19 row_ror:{sh} row_mask:0xf bank_mask:0xf")
            A(f"s_lshl_b32 s46, s{sAW}, 5")
            A(f"s_add_u32 s46, s46, {GSCR}")
            A("v_lshlrev_b32 v20, 3, v17")
            A("v_add_u32 v20, s46, v20")
            A("ds_write_b64 v20, v[18:19]")
        for dw in range(4):
            for ip in range(4):
                A(f"v_perm_b32 v{AF(2*dw)+ip}, v{X(b,2*ip+1)+dw}, v{X(b,2*ip)+dw}, s48")
                A(f"v_perm_b32 v{AF(2*dw+1)+ip}, v{X(b,2*ip+1)+dw}, v{X(b,2*ip)+dw}, s49")
            for j in (2 * dw, 2 * dw + 1):
                A(f"v_mfma_f32_16x16x32_bf16 {v(DA(b,j),4)}, {v(AF(j),4)}, {v(F32,4)}, 0")
    def sl_vwrite():
        for j in range(8):
            p = PW(j & 1)
            A(f"v_cvt_pk_bf16_f32 v{p}, v{DA(0,j)}, v{DA(0,j)+1}")
            A(f"v_cvt_pk_bf16_f32 v{p+1}, v{DA(0,j)+2}, v{DA(0,j)+3}")
            A(f"v_cvt_pk_bf16_f32 v{p+2}, v{DA(1,j)}, v{DA(1,j)+1}")
            A(f"v_cvt_pk_bf16_f32 v{p+3}, v{DA(1,j)+2}, v{DA(1,j)+3}")
            A(f"ds_write_b128 v{vVW[j>>2]}, {v(p,4)} offset:{j*64}")
            if j >= 1: A("s_waitcnt lgkmcnt(1)")
        A("s_waitcnt lgkmcnt(0)")
    Tc = lambda r: 32 + r
    Ts = lambda r: 48 + r
    def sl_twiddles():
        A(f"v_mul_f32 v26, {lit(4/1024)}, v25")
        for r in range(16):
            d2c = 8 * (r >> 2) + (r & 3)
            A(f"v_fmamk_f32 v{Ts(r)}, v24, {lit(d2c/1024)}, v26")
            A(f"v_cos_f32 v{Tc(r)}, v{Ts(r)}")
            A(f"v_sin_f32 v{Ts(r)}, v{Ts(r)}")
    def sl_gate_final():
        A("v_and_b32 v18, 7, v0")
        A("v_lshlrev_b32 v19, 2, v18")
        A(f"v_add_u32 v19, {GSCR}, v19")
        A("ds_read2_b32 v[20:21], v19 offset0:0 offset1:8")
        A("ds_read2_b32 v[22:23], v19 offset0:16 offset1:24")
        A("s_waitcnt lgkmcnt(0)")
        A("v_add_f32 v20, v20, v21")
        A("v_add_f32 v22, v22, v23")
        A("v_add_f32 v20, v20, v22")
        A("v_cvt_pk_bf16_f32 v20, v20, v20")
        A("v_lshlrev_b32 v20, 16, v20")
        A(f"v_mul_f32 v20, {lit(-math.log2(math.e))}, v20")
        A("v_exp_f32 v20, v20")
        A("v_add_f32 v20, 1.0, v20")
        A("v_rcp_f32 v20, v20")
        A("v_cvt_pk_bf16_f32 v20, v20, v20")
        A("v_lshlrev_b32 v20, 16, v20")
        A(f"s_lshl_b32 s46, s{sQ}, 11")
        A(f"s_lshl_b32 s47, s{sU}, 2")
        A("s_add_u32 s46, s46, s47")
        A(f"s_add_u32 s46, s46, {WS_G}")
        A("v_lshlrev_b32 v19, 8, v18")
        A(f"buffer_store_dword v20, v19, s[{SWS}:{SWS+3}], s46 offen", vm="gst")
    Vr = lambda sg: 64 + sg * 4
    Vi = lambda sg: 72 + sg * 4
    Br = lambda sg: 80 + sg * 4
    Bi = lambda sg: 88 + sg * 4
    D1r, D1i, D2r, D2i, OP = 108, 124, 140, 156, 172
    M32 = "v_mfma_f32_32x32x16_bf16"
    def sl_fft1(it):
        for sg in range(2):
            A(f"ds_read_b128 {v(Vr(sg),4)}, v{vVR[sg]} offset:{it*2*VSTR}")
            A(f"ds_read_b128 {v(Vi(sg),4)}, v{vVR[sg]} offset:{it*2*VSTR + VSTR}")
        A("s_waitcnt lgkmcnt(0)")
        A(f"{M32} {v(D1r,16)}, {v(Vr(0),4)}, {v(Fr(0),4)}, 0")
        A(f"{M32} {v(D1i,16)}, {v(Vr(0),4)}, {v(Fi(0),4)}, 0")
        A(f"{M32} {v(D1r,16)}, {v(Vr(1),4)}, {v(Fr(1),4)}, {v(D1r,16)}")
        A(f"{M32} {v(D1i,16)}, {v(Vr(1),4)}, {v(Fi(1),4)}, {v(D1i,16)}")
        for sg in range(2):
            A(f"{M32} {v(D1r,16)}, {v(Vi(sg),4)}, {v(Fn(sg),4)}, {v(D1r,16)}")
            A(f"{M32} {v(D1i,16)}, {v(Vi(sg),4)}, {v(Fr(sg),4)}, {v(D1i,16)}")
    def sl_tw(it):
        for rp in range(8):
            for k in range(2):
                r = 2 * rp + k
                A(f"v_mul_f32 v{18+k}, v{D1r+r}, v{Tc(r)}")
                A(f"v_mul_f32 v{20+k}, v{D1i+r}, v{Tc(r)}")
                A(f"v_fmac_f32 v{18+k}, v{D1i+r}, v{Ts(r)}")
                A(f"v_fma_f32 v{20+k}, -v{D1r+r}, v{Ts(r)}, v{20+k}")
            A(f"v_cvt_pk_bf16_f32 v{Br(0)+rp}, v18, v19")
            A(f"v_cvt_pk_bf16_f32 v{Bi(0)+rp}, v20, v21")
    def sl_fft2(it):
        A(f"{M32} {v(D2r,16)}, {v(Br(0),4)}, {v(Fr(0),4)}, 0")
        A(f"{M32} {v(D2i,16)}, {v(Br(0),4)}, {v(Fi(0),4)}, 0")
        A(f"{M32} {v(D2r,16)}, {v(Br(1),4)}, {v(Fr(1),4)}, {v(D2r,16)}")
        A(f"{M32} {v(D2i,16)}, {v(Br(1),4)}, {v(Fi(1),4)}, {v(D2i,16)}")
        for sg in range(2):
            A(f"{M32} {v(D2r,16)}, {v(Bi(sg),4)}, {v(Fn(sg),4)}, {v(D2r,16)}")
            A(f"{M32} {v(D2i,16)}, {v(Bi(sg),4)}, {v(Fr(sg),4)}, {v(D2i,16)}")
    def sl_store(it):
        A(f"s_lshl_b32 s46, s{sQ}, 3")
        A(f"s_lshl_b32 s47, s{sAW}, 1")
        A("s_add_u32 s46, s46, s47")
        A(f"s_add_u32 s46, s46, {it}")
        A("s_lshl_b32 s46, s46, 6")
        A(f"s_add_u32 s46, s46, s{sU}")
        A("s_lshl_b32 s46, s46, 12")
        A(f"s_add_u32 s46, s46, {WS_Z}")
        for rp in range(8): A(f"v_cvt_pk_bf16_f32 v{OP+rp}, v{D2r+2*rp}, v{D2r+2*rp+1}")
        for rp in range(8): A(f"v_cvt_pk_bf16_f32 v{OP+8+rp}, -v{D2i+2*rp}, -v{D2i+2*rp+1}")
        for c in range(2):
            for hlf in range(2):
                A(f"buffer_store_dwordx4 {v(OP+8*c+4*hlf,4)}, v{vZ}, s[{SWS}:{SWS+3}], s46 offen offset:{c*2048+hlf*16}", vm="zst")
    sched = {}
    if FFT:
        sched = {1: [lambda: sl_gate_and_blk(0)], 2: [lambda: sl_gate_and_blk(1), sl_vwrite], 3: [sl_twiddles, sl_gate_final, lambda: sl_fft1(0)],
                 4: [lambda: sl_tw(0), lambda: sl_fft2(0)], 5: [lambda: sl_store(0), lambda: sl_fft1(1)], 6: [lambda: sl_tw(1), lambda: sl_fft2(1)],
                 7: [lambda: sl_store(1)]}
    A.wait_vm("st0")
    A("s_barrier")
    for j in range(15):
        if j >= 1 and j + 2 <= 15: stage(j + 2)
        for f in sched.get(j, []): f()
        A.wait_vm(f"st{j+1}")
        A("s_barrier")
    A.label("K1_END")
    A("s_endpgm")
    txt = A.finalize()
    return dict(name="k1_kernel", grid=256, block=512, lds=K1_LDS, body=txt, vgpr=256, accum=256, sgpr=64), A

if __name__ == "__main__":
    k1, A = gen_k1({})
    print("k1 instrs", len(A.ins), "nops inserted", A.inserted)
    open("k1.s", "w").write(wrap([k1]))
```

```python
KNAME = "gated_mix__sliding_local_dilated__spectral_fnet__prompt_kernel"
def wrap(kernels):
    s = "; generated\n"
    for k in kernels:
        s += f"; @launch kernel={k['name']} grid=({k['grid']},1,1) block=({k['block']},1,1) lds={k['lds']}\n"
    s += '.amdgcn_target "amdgcn-amd-amdhsa--gfx950"\n.text\n'
    seen = set()
    for k in kernels:
        if k['name'] in seen: continue
        seen.add(k['name'])
        s += f".globl {k['name']}\n.p2align 8\n.type {k['name']},@function\n{k['name']}:\n{k['body']}\n"
    s += '.section .rodata,"a"\n'
    seen = set()
    for k in kernels:
        if k['name'] in seen: continue
        seen.add(k['name'])
        s += f""".p2align 6
.amdhsa_kernel {k['name']}
  .amdhsa_next_free_vgpr {k.get('vgpr',256)}
  .amdhsa_next_free_sgpr {k.get('sgpr',102)}
  .amdhsa_accum_offset {k.get('accum',256)}
  .amdhsa_group_segment_fixed_size 0
  .amdhsa_kernarg_size 96
  .amdhsa_user_sgpr_count 2
  .amdhsa_user_sgpr_kernarg_segment_ptr 1
  .amdhsa_system_sgpr_workgroup_id_x 1
.end_amdhsa_kernel
"""
    return s
```

```python
import math
from asmgen import Asm, v, a, s
from gen import *

K2_LDS = 163840
ZL = 131072
def gen_k2(opts):
    A = Asm()
    SWO, SWS, SCR, SCI, SO = 12, 16, 20, 24, 28
    sW, sI, sJ = 32, 33, 34
    A("s_cmp_ge_u32 s2, 256")
    A("s_cbranch_scc1 K2_END")
    A("s_load_dwordx2 s[4:5], s[0:1], 16")
    A("s_load_dwordx4 s[8:11], s[0:1], 32")
    A("s_load_dwordx2 s[6:7], s[0:1], 72")
    A("s_load_dwordx2 s[36:37], s[0:1], 88")
    A("v_lshrrev_b32 v1, 6, v0")
    A("v_and_b32 v0, 63, v0")
    A(f"v_readfirstlane_b32 s{sW}, v1")
    A("s_and_b32 s38, s2, 7")
    A("s_lshr_b32 s39, s2, 3")
    A("s_and_b32 s40, s38, 3")
    A("s_lshl_b32 s40, s40, 2")
    A("s_and_b32 s41, s39, 3")
    A(f"s_add_u32 s{sI}, s40, s41")
    A("s_lshr_b32 s40, s38, 2")
    A("s_lshl_b32 s40, s40, 3")
    A("s_lshr_b32 s41, s39, 2")
    A(f"s_add_u32 s{sJ}, s40, s41")
    vOo = [2, 3]; vC = [4, 5]; vDW = 6; vDZ = 7; vTW = [8, 9, 10, 11]; vTZ = [12, 13, 14, 15]; vG = [16, 17]; vOut = [18, 19]
    A("v_and_b32 v20, 15, v0")
    A("v_lshrrev_b32 v21, 4, v0")
    A("v_lshrrev_b32 v22, 3, v0")
    A("v_and_b32 v23, 7, v0")
    A(f"s_lshr_b32 s40, s{sW}, 1")
    A(f"s_lshl_b32 s41, s{sI}, 1")
    A("s_add_u32 s41, s41, s40")
    A(f"s_and_b32 s42, s{sW}, 1")
    A("s_lshl_b32 s42, s42, 10")
    A("s_add_u32 s42, s42, s41")
    A("v_lshlrev_b32 v24, 5, v20")
    A("v_add_u32 v24, s42, v24")
    A("v_lshlrev_b32 v25, 4, v21")
    A(f"v_lshl_add_u32 v{vOo[0]}, v24, 11, v25")
    A(f"v_add_u32 v{vOo[1]}, {512*2048}, v{vOo[0]}")
    A(f"v_lshl_add_u32 v{vC[0]}, v24, 12, v25")
    A(f"v_add_u32 v{vC[1]}, {512*4096}, v{vC[0]}")
    A("v_lshlrev_b32 v26, 2, v24")
    A("v_and_b32 v27, 6, v22")
    A("v_xor_b32 v27, v27, v23")
    A("v_lshlrev_b32 v27, 4, v27")
    A(f"s_lshl_b32 s43, s{sW}, 14")
    A(f"s_lshl_b32 s44, s{sJ}, 7")
    A("s_add_u32 s43, s43, s44")
    A("v_lshl_add_u32 v27, v22, 11, v27")
    A(f"v_add_u32 v{vDW}, s43, v27")
    A("v_and_b32 v27, 2, v22")
    A(f"s_and_b32 s45, s{sW}, 1")
    A("s_lshl_b32 s45, s45, 2")
    A("v_or_b32 v27, s45, v27")
    A("v_xor_b32 v27, v27, v23")
    A("v_lshlrev_b32 v27, 4, v27")
    A("v_lshl_add_u32 v27, v22, 12, v27")
    A(f"s_lshl_b32 s43, s{sW}, 15")
    A("s_add_u32 s43, s43, s44")
    A(f"s_lshl_b32 s45, s{sI}, 19")
    A("s_add_u32 s43, s43, s45")
    A(f"v_add_u32 v{vDZ}, s43, v27")
    A("v_bfe_u32 v27, v0, 2, 2")
    A("v_and_b32 v28, 3, v0")
    A("v_lshl_add_u32 v29, v21, 2, v27")
    A("v_bfe_u32 v30, v29, 1, 2")
    A("v_lshlrev_b32 v30, 5, v30")
    A("v_lshl_add_u32 v30, v29, 7, v30")
    A(f"v_lshl_add_u32 v{vTW[0]}, v28, 3, v30")
    for blk in range(1, 4): A(f"v_xor_b32 v{vTW[blk]}, {32*blk}, v{vTW[0]}")
    A("v_lshl_add_u32 v29, v21, 3, v27")
    A("v_lshrrev_b32 v30, 1, v27")
    A("v_and_b32 v31, 1, v21")
    A("v_lshl_or_b32 v30, v31, 1, v30")
    A("v_lshlrev_b32 v30, 5, v30")
    A("v_lshl_add_u32 v30, v29, 7, v30")
    A("v_lshl_add_u32 v30, v28, 3, v30")
    A("s_lshl_b32 s45, s40, 14")
    A(f"s_add_u32 s45, s45, {ZL}")
    A(f"v_add_u32 v{vTZ[0]}, s45, v30")
    for blk in range(1, 4): A(f"v_xor_b32 v{vTZ[blk]}, {32*blk}, v{vTZ[0]}")
    A("v_lshlrev_b32 v29, 5, v31")
    A("v_lshrrev_b32 v30, 1, v21")
    A("v_lshl_add_u32 v29, v30, 4, v29")
    A("v_lshl_add_u32 v29, v24, 11, v29")
    A(f"v_add_u32 v{vOut[0]}, s44, v29")
    A(f"v_add_u32 v{vOut[1]}, {512*2048}, v{vOut[0]}")
    sWB = 46
    A(f"s_lshl_b32 s{sWB}, s{sW}, 10")
    A("s_waitcnt lgkmcnt(0)")
    srd(A, SWO, 4, 2 << 20)
    srd(A, SWS, 36, WS_BYTES)
    srd(A, SCR, 8, 8 << 20)
    srd(A, SCI, 10, 8 << 20)
    srd(A, SO, 6, 4 << 20)
    CF = lambda nb, u: 32 + (nb * 4 + u) * 4
    accA = lambda nb, blk: 64 + (nb * 4 + blk) * 4
    accY = lambda nb, blk: 96 + (nb * 4 + blk) * 4
    WF = lambda st, blk: 128 + (st * 4 + blk) * 4
    OF = lambda hd, nb: (hd * 2 + nb) * 4
    def zload():
        for k in range(8):
            ap, c, h2 = k >> 2, (k >> 1) & 1, k & 1
            A(f"s_add_u32 m0, s{sWB}, {ZL + k*4096}")
            A(f"s_mov_b32 s47, {WS_Z + ap*64*4096 + h2*32*4096 + c*2048}")
            A(f"buffer_load_dwordx4 v{vDZ}, s[{SWS}:{SWS+3}], s47 offen lds", vm="z")
        for nb in range(2):
            for u in range(4):
                hi, c = u >> 1, u & 1
                S_ = SCI if c else SCR
                A(f"buffer_load_dwordx4 {v(CF(nb,u),4)}, v{vC[nb]}, s[{S_}:{S_+3}], 0 offen offset:{hi*64}", vm="z")
        A(f"s_mov_b32 s47, {WS_G}")
        A(f"buffer_load_dword v{vG[0]}, v26, s[{SWS}:{SWS+3}], s47 offen", vm="z")
        A(f"buffer_load_dword v{vG[1]}, v26, s[{SWS}:{SWS+3}], s47 offen offset:2048", vm="z")
    def seg(sg):
        for k in range(4):
            A(f"s_add_u32 m0, s{sWB}, {sg*16384 + k*4096}")
            A(f"s_mov_b32 s47, {(sg*4+k)*65536}")
            A(f"buffer_load_dwordx4 v{vDW}, s[{SWO}:{SWO+3}], s47 offen lds", vm=f"s{sg}")
        for hd in range(4 * sg, 4 * sg + 4):
            for nb in range(2):
                A(f"buffer_load_dwordx4 {a(OF(hd,nb),4)}, v{vOo[nb]}, s[{SWS}:{SWS+3}], 0 offen offset:{hd*64}", vm=f"s{sg}")
    M16 = "v_mfma_f32_16x16x32_bf16"
    def rd_w(st, hd):
        L = []
        for blk in range(4):
            for sec in range(2):
                L.append(f"ds_read_b64_tr_b16 {v(WF(st,blk)+2*sec,2)}, v{vTW[blk]} offset:{(hd % 16)*4096 + sec*2048}")
        return L
    def rd_z(st, u):
        hi, c = u >> 1, u & 1
        L = []
        for blk in range(4):
            for sec in range(2):
                L.append(f"ds_read_b64_tr_b16 {v(WF(st,blk)+2*sec,2)}, v{vTZ[blk]} offset:{c*8192 + hi*4096 + sec*512}")
        return L
    def mm_w(st, hd):
        return [f"{M16} {v(accA(nb,blk),4)}, {v(WF(st,blk),4)}, {a(OF(hd,nb),4)}, " + ("0" if hd == 0 else v(accA(nb,blk),4)) for blk in range(4) for nb in range(2)]
    def mm_z(st, u):
        return [f"{M16} {v(accY(nb,blk),4)}, {v(WF(st,blk),4)}, {v(CF(nb,u),4)}, " + ("0" if u == 0 else v(accY(nb,blk),4)) for blk in range(4) for nb in range(2)]
    zload(); seg(0); seg(1); seg(2)
    A.wait_vm("z")
    A("s_barrier")
    seg(3); seg(4)
    for r in rd_z(0, 0): A(r)
    for u in range(4):
        A("s_waitcnt lgkmcnt(0)")
        interleave(A, mm_z(u & 1, u), rd_z((u + 1) & 1, u + 1) if u < 3 else [])
    for sg in range(8):
        A.wait_vm(f"s{sg}")
        A("s_barrier")
        if sg + 5 < 8: seg(sg + 5)
        if sg == 4:
            for blk in range(4): A(f"v_add_u32 v{vTW[blk]}, {65536}, v{vTW[blk]}")
        for r in rd_w(0, 4 * sg): A(r)
        for k in range(4):
            hd = 4 * sg + k
            A("s_waitcnt lgkmcnt(0)")
            interleave(A, mm_w(k & 1, hd), rd_w((k + 1) & 1, hd + 1) if k < 3 else [])
    for nb in range(2):
        A(f"v_sub_f32 v{20+nb}, 1.0, v{vG[nb]}")
    for nb in range(2):
        for blk in range(4):
            for r in range(4):
                A(f"v_mul_f32 v{accY(nb,blk)+r}, v{accY(nb,blk)+r}, v{20+nb}")
    P = lambda nb, blk: 128 + (nb * 4 + blk) * 2
    for nb in range(2):
        for bp in range(2):
            base = 128 + (nb * 2 + bp) * 4
            for k in range(2):
                blk = 2 * bp + k
                for r in range(4):
                    A(f"v_fmac_f32 v{accY(nb,blk)+r}, v{accA(nb,blk)+r}, v{vG[nb]}")
            for k in range(2):
                blk = 2 * bp + k
                A(f"v_cvt_pk_bf16_f32 v{base+2*k}, v{accY(nb,blk)}, v{accY(nb,blk)+1}")
                A(f"v_cvt_pk_bf16_f32 v{base+2*k+1}, v{accY(nb,blk)+2}, v{accY(nb,blk)+3}")
            A(f"v_permlane16_swap_b32 v{base}, v{base+2}")
            A(f"v_permlane16_swap_b32 v{base+1}, v{base+3}")
            A(f"buffer_store_dwordx4 {v(base,4)}, v{vOut[nb]}, s[{SO}:{SO+3}], 0 offen offset:{bp*64}")
    A.label("K2_END")
    A("s_endpgm")
    txt = A.finalize()
    return dict(name="k2_kernel", grid=256, block=256, lds=K2_LDS, body=txt, vgpr=512, accum=256, sgpr=64), A

HEADER = open("gated_mix__sliding_local_dilated__spectral_fnet__prompt.s.ref").read().split("; Override launch")[0]
def full(opts, path):
    k1, A1 = gen_k1(opts)
    k2, A2 = gen_k2(opts)
    print("k1 instrs", len(A1.ins), "nops", A1.inserted, "| k2 instrs", len(A2.ins), "nops", A2.inserted)
    open(path, "w").write(HEADER + wrap([k1, k2]))
if __name__ == "__main__":
    full({}, "full.s")
```
